```python
import torch

def _softmax(x, axis=-1):
    return torch.softmax(x, dim=axis)
def _gelu(x):
    return torch.nn.functional.gelu(x, approximate="tanh")
def _silu(x):
    return torch.nn.functional.silu(x)
def _sigmoid(x):
    return torch.sigmoid(x)
def _layernorm(x, axis=-1, eps=1e-5):
    m = x.mean(dim=axis, keepdim=True)
    v = x.var(dim=axis, keepdim=True, unbiased=False)
    return (x - m) / torch.sqrt(v + eps)
def _scatter_add(tgt, idx, src, axis=0):
    return tgt.clone().index_add_(axis, idx, src)
def _segment_sum(src, seg, n):
    out = torch.zeros((n,) + src.shape[1:], dtype=src.dtype)
    return out.index_add_(0, seg, src)
def _pad(x, pw):
    flat = tuple(v for pair in reversed(pw) for v in pair)
    return torch.nn.functional.pad(x, flat)

kernel_name = 'standalone__self_sup_conv_stem_hubert__speech'

def setup_inputs():

    _w = (lambda a: (lambda t: t.to(torch.bfloat16) if t.is_floating_point() else t)(torch.as_tensor(a)))
    B, T, D, K = 2, 4000, 512, 5
    scale = (1.0 / (K * D)) ** 0.5
    return {
        "x": _w((lambda *s: torch.randn(*s, dtype=torch.bfloat16) * 0.05)(B, T, D)),
        "w": _w((lambda *s: torch.randn(*s, dtype=torch.bfloat16) * 0.05)(K, D, D) * scale),
        "b": _w((lambda *s: torch.randn(*s, dtype=torch.bfloat16) * 0.05)(D) * 0.1),
        "gamma": _w(torch.ones((D,), dtype=float)),
        "beta": _w(torch.zeros((D,), dtype=float)),
    }

def reference(x, w, b, gamma, beta):
    B, T, D = x.shape
    K = w.shape[0]
    s = 2
    L = (T - K) // s + 1
    y = torch.einsum('blc,cd->bld', x[:, 0 : s * L : s, :], w[0])
    for i in range(1, K):
        y = y + torch.einsum('blc,cd->bld', x[:, i : i + s * L : s, :], w[i])
    y = y + b[None, None, :]
    mu = y.mean(1, keepdims=True)
    var = ((y - mu) ** 2).mean(1, keepdims=True)
    yn = (y - mu) / torch.sqrt(var + 1e-5)
    yn = yn * gamma[None, None, :] + beta[None, None, :]
    return _gelu(yn)
```

```python
KNAME = "standalone__self_sup_conv_stem_hubert__speech_kernel"
class Asm:
    def __init__(self):
        self.lines = []
        self.nlab = 0
    def __call__(self, s, *a):
        for ln in s.split("\n"):
            ln = ln.strip()
            if ln: self.lines.append("    " + ln)
    def label(self, name):
        self.lines.append(name + ":")
    def newlabel(self, p="L"):
        self.nlab += 1
        return "%s_%d" % (p, self.nlab)
    def comment(self, s):
        self.lines.append("    ; " + s)
    def text(self):
        return "\n".join(self.lines) + "\n"

HEADER = """; Kernarg layout for this problem (64 bytes, ptrs only, base s[0:1]):
"""
def wrap(body, grid, block, lds, vgpr=256, sgpr=102, accum=256, kname=KNAME):
    s = HEADER
    s += "; @launch grid=(%d,1,1) block=(%d,1,1) lds=%d\n" % (grid, block, lds)
    s += '.amdgcn_target "amdgcn-amd-amdhsa--gfx950"\n.text\n.globl %s\n.p2align 8\n.type %s,@function\n%s:\n' % (kname, kname, kname)
    s += body
    s += """.section .rodata,"a"
.p2align 6
.amdhsa_kernel %s
  .amdhsa_next_free_vgpr %d
  .amdhsa_next_free_sgpr %d
  .amdhsa_accum_offset %d
  .amdhsa_group_segment_fixed_size 0
  .amdhsa_kernarg_size 64
  .amdhsa_user_sgpr_count 2
  .amdhsa_user_sgpr_kernarg_segment_ptr 1
  .amdhsa_system_sgpr_workgroup_id_x 1
.end_amdhsa_kernel
""" % (kname, vgpr, sgpr, accum)
    return s
```

```python
import sys, math
from asmlib import *
from build import build

BUF = 74752
AEX = 32768
BOF = 33792
TAPS = [1, 3, 0, 2, 4]
SENT = 0xFFFFFFFF

def f2u(x):
    import struct
    return struct.unpack("<I", struct.pack("<f", x))[0]

def gen(name, D=4, stamps=False, out_path=None, nomfma=False, noload=False, itst=False, dbgst=None):
    a = Asm()
    if stamps:
        a("s_memrealtime s[60:61]"); a("s_memtime s[62:63]")
    a("s_load_dwordx16 s[4:19], s[0:1], 0")
    a("s_cmp_ge_u32 s2, 256")
    a("s_cbranch_scc1 L_end")
    a("v_lshrrev_b32 v1, 6, v0")
    a("v_and_b32 v0, 63, v0")
    a("v_readfirstlane_b32 s3, v1")
    a("s_and_b32 s40, s2, 7")
    a("s_lshr_b32 s41, s2, 3")
    a("s_lshr_b32 s42, s40, 1"); a("s_lshl_b32 s42, s42, 3"); a("s_lshr_b32 s43, s41, 2"); a("s_add_u32 s42, s42, s43")
    a("s_and_b32 s43, s40, 1"); a("s_lshl_b32 s43, s43, 2"); a("s_and_b32 s44, s41, 3"); a("s_add_u32 s43, s43, s44")
    a("s_lshr_b32 s44, s42, 4")
    a("s_and_b32 s45, s42, 15")
    a("s_lshl_b32 s46, s44, 3"); a("s_add_u32 s46, s46, s43")
    a("s_add_u32 s47, s44, 1")
    a("s_mul_i32 s30, s47, %d" % (1998*1024)); a("s_mov_b32 s31, 0x20000")
    a("s_cmp_ge_u32 s3, 4")
    a("s_cbranch_scc1 L_consumer")

    a("s_mul_i32 s22, s47, 4096000"); a("s_mov_b32 s23, 0x20000")
    a("s_mov_b32 s26, 2621440"); a("s_mov_b32 s27, 0x20000")
    a("v_lshrrev_b32 v5, 3, v0")
    a("v_and_b32 v6, 7, v0")
    a("v_and_b32 v7, 2, v5"); a("v_lshlrev_b32 v7, 1, v7")
    a("v_bfe_u32 v8, v5, 2, 1"); a("v_lshl_or_b32 v7, v8, 1, v7")
    a("v_xor_b32 v7, v7, v6"); a("v_lshlrev_b32 v7, 4, v7")
    a("v_lshl_add_u32 v2, v5, 14, v7")
    a("v_and_b32 v7, 3, v5"); a("v_lshl_add_u32 v7, v8, 3, v7")
    a("v_and_b32 v9, 6, v5"); a("v_xor_b32 v9, v9, v6"); a("v_lshlrev_b32 v9, 4, v9")
    a("v_lshl_add_u32 v3, v7, 10, v9")
    a("v_lshrrev_b32 v7, 4, v0"); a("v_lshlrev_b32 v7, 11, v7"); a("v_lshl_add_u32 v4, v6, 4, v7")
    a("s_mul_i32 s48, s44, 4096000"); a("s_lshl_b32 s49, s45, 18"); a("s_add_u32 s48, s48, s49")
    a("s_add_u32 s50, s48, %d" % (256*1024))
    a("s_lshl_b32 s49, s3, 11"); a("s_add_u32 s48, s48, s49")
    a("s_lshl_b32 s49, s43, 7"); a("s_lshl_b32 s51, s3, 14"); a("s_add_u32 s49, s49, s51")
    a("s_lshl_b32 s52, s3, 12")
    a("s_add_u32 s53, s52, %d" % BUF)
    a("s_lshl_b32 s54, s3, 11"); a("s_add_u32 s54, s54, %d" % BOF)
    a("s_add_u32 s55, s54, %d" % BUF)
    a("s_mov_b32 s56, %d" % AEX); a("s_mov_b32 s57, %d" % (AEX+BUF))
    a("v_and_b32 v10, 15, v0")
    a("s_lshl_b32 s58, s43, 6"); a("s_lshl_b32 s59, s3, 4"); a("s_add_u32 s58, s58, s59")
    a("v_add_u32 v11, s58, v10"); a("v_lshlrev_b32 v11, 1, v11")
    a("s_lshl_b32 s58, s46, 2"); a("s_add_u32 s58, s58, 64"); a("v_mov_b32 v12, s58")
    a("s_lshl_b32 s58, s46, 13"); a("s_lshl_b32 s59, s3, 11"); a("s_add_u32 s58, s58, s59")
    a("v_lshlrev_b32 v13, 3, v0"); a("v_add_u32 v13, s58, v13")
    a("s_waitcnt lgkmcnt(0)")
    a("s_mov_b32 s20, s4"); a("s_mov_b32 s21, s5"); a("s_mov_b32 s24, s6"); a("s_mov_b32 s25, s7")
    a("s_mov_b32 s28, s14"); a("s_mov_b32 s29, s15")

    def ld(v, srd, sb, go, lb, lo):
        a("s_add_u32 m0, %s, %d" % (lb, lo))
        a("s_add_u32 s59, %s, %d" % (sb, go & 0xffffffff))
        if not noload:
            a("buffer_load_dwordx4 %s, %s, s59 offen lds" % (v, srd))
    def group(rel, ph, cur=True, nxt=True):
        odd = rel & 1
        La, Lb, Le = ("s53", "s55", "s57") if odd else ("s52", "s54", "s56")
        n = 0
        def A(par, half, st):
            for qb in range(2):
                ld("v2", "s[20:23]", "s48", par*1024 + half*8192 + qb*131072 + st*128, La, par*2048 + half*16384 + qb*1024)
            return 2
        def Bt(i, st):
            for e in range(2):
                ld("v3", "s[24:27]", "s49", i*524288 + e*4096 + st*65536, Lb, i*8192 + e*1024)
            return 2
        def extra(par, st):
            lab = a.newlabel("L_x")
            a("s_cmp_lg_u32 s3, 0"); a("s_cbranch_scc1 %s" % lab)
            a("s_mov_b64 exec, %s" % ("0xff" if par else "0x00ff00ff"))
            ld("v4", "s[20:23]", "s50", par*1024 + st*128, Le, par*512)
            a("s_mov_b64 exec, -1")
            a.label(lab)
        if ph == 0 and cur: extra(0, rel); n += Bt(3, rel); n += A(0, 0, rel)
        if ph == 1 and cur: n += Bt(0, rel); n += A(0, 1, rel)
        if ph == 2:
            if nxt: extra(1, rel+1)
            if cur: n += Bt(2, rel)
            if nxt: n += A(1, 0, rel+1)
        if ph == 3:
            if cur: n += Bt(4, rel)
            if nxt: n += A(1, 1, rel+1)
        if ph == 4 and nxt: n += Bt(1, rel+1)
        return n
    issued = []
    def cnt_after(b):
        return sum(n for g, n in issued if g > b)
    n = group(-1, 2, cur=False) + group(-1, 4, cur=False) + group(-1, 3, cur=False)
    issued.append((-1, n))
    for g in range(0, D-1):
        issued.append((g, group(g//5, g%5)))
    a("s_waitcnt vmcnt(%d)" % cnt_after(-1))
    a("s_barrier")
    issued.append((D-1, group((D-1)//5, (D-1)%5)))
    def advance():
        a("s_add_u32 s48, s48, 128"); a("s_add_u32 s50, s50, 128"); a("s_add_u32 s49, s49, 65536")
        for p, q in (("s52","s53"),("s54","s55"),("s56","s57")):
            a("s_mov_b32 s59, %s" % p); a("s_mov_b32 %s, %s" % (p, q)); a("s_mov_b32 %s, s59" % q)
    NLOOP = 6
    a("s_mov_b32 s58, 0")
    a.label("L_lloop")
    waits0 = []
    for ph in range(5):
        w = cnt_after(ph); waits0.append(w)
        a("s_waitcnt vmcnt(%d)" % w); a("s_barrier")
        g = ph + D
        issued.append((g, group(g//5, g%5)))
    advance()
    a("s_add_u32 s58, s58, 1"); a("s_cmp_lt_u32 s58, %d" % NLOOP); a("s_cbranch_scc1 L_lloop")
    gc = {g % 5: n for g, n in issued if g >= 0}
    for it in range(1, NLOOP):
        for ph in range(5):
            assert cnt_after(5*it+ph) == waits0[ph]
            g = 5*it + ph + D
            issued.append((g, gc[g % 5]))
    done_misc = False
    for it in range(NLOOP, 8):
        for ph in range(5):
            b = 5*it + ph
            a("s_waitcnt vmcnt(%d)" % cnt_after(b)); a("s_barrier")
            g = b + D
            if g <= 38:
                issued.append((g, group(g//5 - NLOOP, g % 5, nxt=(g//5 < 7))))
            elif not done_misc:
                done_misc = True
                a("global_load_dword v14, v12, s[16:17] sc0 sc1")
                a("global_load_ushort v15, v11, s[8:9]")
                a("global_load_ushort v16, v11, s[10:11]")
                a("global_load_ushort v17, v11, s[12:13]")
                issued.append((100, 4))
    a("s_barrier")
    a("s_barrier")
    a("s_branch L_poll")

    a.label("L_consumer")
    XA = lambda j: 16 + 4*j
    XB = lambda i, cf: 92 + 8*i + 4*cf
    AC = lambda f, cf: 132 + 32*cf + 4*f
    a("s_sub_u32 s48, s3, 4")
    a("s_and_b32 s49, s48, 1")
    a("s_lshr_b32 s50, s48, 1")
    a("v_and_b32 v8, 15, v0")
    a("v_lshrrev_b32 v9, 4, v0")
    a("s_lshl_b32 s51, s49, 2")
    a("v_add_u32 v10, s51, v9")
    def swz(dst, q):
        a("v_and_b32 v11, 2, %s" % q); a("v_lshlrev_b32 v11, 1, v11")
        a("v_bfe_u32 v12, %s, 2, 1" % q); a("v_lshl_or_b32 v11, v12, 1, v11")
        a("v_xor_b32 v11, v11, v10"); a("v_lshlrev_b32 v11, 4, v11")
        a("v_lshl_add_u32 %s, %s, 7, v11" % (dst, q))
    swz("v2", "v8")
    a("v_add_u32 v13, 1, v8")
    swz("v3", "v13")
    a("v_lshlrev_b32 v11, 4, v10")
    a("v_cmp_eq_u32 vcc, 15, v8")
    a("v_add_u32 v4, 2048, v3"); a("v_add_u32 v5, 4096, v3")
    a("v_add_u32 v12, %d, v11" % (AEX)); a("v_cndmask_b32 v3, v3, v12, vcc")
    a("v_add_u32 v12, %d, v11" % (AEX+512)); a("v_cndmask_b32 v4, v4, v12, vcc")
    a("v_add_u32 v12, %d, v11" % (AEX+256)); a("v_cndmask_b32 v5, v5, v12, vcc")
    a("v_lshrrev_b32 v11, 2, v8"); a("v_and_b32 v12, 1, v9"); a("v_lshl_add_u32 v11, v12, 2, v11")
    a("v_lshrrev_b32 v12, 1, v9"); a("s_lshl_b32 s51, s49, 1"); a("v_add_u32 v12, s51, v12")
    a("v_lshlrev_b32 v12, 11, v12"); a("v_lshl_add_u32 v12, v11, 7, v12")
    a("v_bfe_u32 v13, v8, 1, 1")
    a("s_lshl_b32 s51, s50, 2"); a("s_lshl_b32 s52, s49, 1"); a("s_add_u32 s51, s51, s52")
    a("v_add_u32 v13, s51, v13"); a("v_and_b32 v11, 6, v11"); a("v_xor_b32 v13, v13, v11")
    a("v_lshl_add_u32 v12, v13, 4, v12")
    a("v_and_b32 v13, 1, v8"); a("v_lshl_add_u32 v12, v13, 3, v12")
    a("v_add_u32 v7, %d, v12" % BOF)
    a("v_xor_b32 v6, 32, v7")
    for r in (2,3,4,5,6,7):
        a("v_add_u32 v%d, %d, v%d" % (r, BUF, r))
    a("s_mov_b32 s53, %d" % ((-BUF) & 0xffffffff))
    for r in range(132, 196):
        a("v_mov_b32 v%d, 0" % r)
    a("s_lshl_b32 s54, s46, 13"); a("s_lshl_b32 s55, s45, 7"); a("s_add_u32 s54, s54, s55")
    a("v_lshlrev_b32 v14, 3, v8"); a("v_add_u32 v14, s54, v14")
    a("v_lshl_add_u32 v15, v9, 11, v14")
    a("s_lshl_b32 s55, s48, 11"); a("v_add_u32 v14, s55, v14")
    a("v_lshrrev_b32 v11, 5, v0"); a("v_lshl_add_u32 v14, v11, 2, v14")
    a("s_cmp_eq_u32 s48, 0"); a("s_cselect_b32 s56, 1, 99")
    a("s_waitcnt lgkmcnt(0)")
    a("s_mov_b32 s28, s14"); a("s_mov_b32 s29, s15")
    a("s_cbranch_scc0 L_noclear")
    a("v_mov_b32 v10, -1"); a("v_mov_b32 v11, -1")
    a("global_store_dwordx2 v15, v[10:11], s[18:19] sc0 sc1")
    a.label("L_noclear")
    def rdA(j):
        if j < 16: return "ds_read_b128 v[%d:%d], v2 offset:%d" % (XA(j), XA(j)+3, j*2048)
        return "ds_read_b128 v[%d:%d], v%d" % (XA(j), XA(j)+3, 3 + j - 16)
    def rdB(i):
        o = []
        for cf in range(2):
            for e in range(2):
                o.append("ds_read_b64_tr_b16 v[%d:%d], v%d offset:%d" % (XB(i,cf)+2*e, XB(i,cf)+2*e+1, 6+cf, i*8192 + e*1024))
        return o
    def toggle():
        return ["v_add_u32 v%d, s53, v%d" % (r, r) for r in (2,3,4,5,6,7)] + ["s_sub_u32 s53, 0, s53"]
    a("s_barrier")
    if stamps:
        a("s_memrealtime s[64:65]"); a("s_memtime s[66:67]")
    for s in rdB(1) + [rdA(j) for j in (1,3,5,7,9,11,13,15,17)] + toggle(): a(s)
    a("s_mov_b32 s57, 0")
    a(".p2align 3")
    a.label("L_cloop")
    RS = [rdB(3) + [rdA(j) for j in (0,16,2,18,4,6)],
          rdB(0) + [rdA(j) for j in (8,10,12,14)],
          rdB(2) + [rdA(j) for j in (1,17,3,5,7)],
          rdB(4) + [rdA(j) for j in (9,11,13,15)],
          rdB(1) + toggle()]
    for ph in range(5):
        i = TAPS[ph]
        a("s_waitcnt lgkmcnt(0)"); a("s_barrier")
        order = [(f, cf) for f in range(8) for cf in range(2)] if ph < 4 else [(f, cf) for cf in range(2) for f in range(8)]
        fill = list(RS[ph])
        for k, (f, cf) in enumerate(order):
            if not nomfma:
                a("v_mfma_f32_16x16x32_bf16 v[%d:%d], v[%d:%d], v[%d:%d], v[%d:%d]" % (AC(f,cf), AC(f,cf)+3, XA(2*f+i), XA(2*f+i)+3, XB(i,cf), XB(i,cf)+3, AC(f,cf), AC(f,cf)+3))
            if fill: a(fill.pop(0))
        assert not fill
    if itst:
        a("s_cmp_lg_u32 s3, 4"); a("s_cbranch_scc1 L_nost")
        a("s_memrealtime s[84:85]"); a("s_memtime s[86:87]"); a("s_waitcnt lgkmcnt(0)")
        a("s_lshl_b32 s58, s2, 8"); a("s_add_u32 s58, s58, 0x8000060"); a("s_lshl_b32 s59, s57, 4"); a("s_add_u32 s58, s58, s59"); a("v_mov_b32 v1, s58")
        for q in range(4): a("v_mov_b32 v%d, s%d" % (196+q, 84+q))
        a("s_mov_b64 exec, 1")
        a("global_store_dwordx4 v1, v[196:199], s[18:19]")
        a("s_mov_b64 exec, -1")
        a.label("L_nost")
    a("s_cmp_eq_u32 s57, s56"); a("s_cbranch_scc1 L_signal")
    a.label("L_sigdone")
    a("s_add_u32 s57, s57, 1"); a("s_cmp_lt_u32 s57, 8"); a("s_cbranch_scc1 L_cloop")
    if stamps:
        a("s_memrealtime s[68:69]"); a("s_memtime s[70:71]")
    a("s_lshl_b32 s51, s48, 13"); a("v_lshlrev_b32 v2, 4, v0"); a("v_add_u32 v2, s51, v2")
    a("v_xor_b32 v3, 0x2000, v2")
    for f in range(8):
        a("ds_write_b128 v2, v[%d:%d] offset:%d" % (AC(f,0), AC(f,0)+3, f*1024))
    a("s_waitcnt lgkmcnt(0)"); a("s_barrier")
    for f in range(8):
        a("ds_read_b128 v[%d:%d], v3 offset:%d" % (16+4*f, 19+4*f, f*1024))
    a("s_cmp_eq_u32 s45, 15"); a("s_cselect_b32 s53, 0xffff, 0"); a("s_mov_b32 s52, 0")
    for f in range(8):
        a("s_waitcnt lgkmcnt(%d)" % (7-f))
        y = AC(f,1)
        a("v_pk_add_f32 v[%d:%d], v[%d:%d], v[%d:%d]" % (y, y+1, y, y+1, 16+4*f, 17+4*f))
        a("v_pk_add_f32 v[%d:%d], v[%d:%d], v[%d:%d]" % (y+2, y+3, y+2, y+3, 18+4*f, 19+4*f))
        if f >= 6:
            a("v_cndmask_b32 v%d, v%d, 0, s[52:53]" % (y+1, y+1))
        if f == 0:
            a("v_pk_add_f32 v[4:5], v[%d:%d], v[%d:%d]" % (y, y+1, y+2, y+3))
            a("v_pk_mul_f32 v[6:7], v[%d:%d], v[%d:%d]" % (y, y+1, y, y+1))
        else:
            a("v_pk_add_f32 v[4:5], v[4:5], v[%d:%d]" % (y, y+1))
            a("v_pk_fma_f32 v[6:7], v[%d:%d], v[%d:%d], v[6:7]" % (y, y+1, y, y+1))
            a("v_pk_add_f32 v[4:5], v[4:5], v[%d:%d]" % (y+2, y+3))
        a("v_pk_fma_f32 v[6:7], v[%d:%d], v[%d:%d], v[6:7]" % (y+2, y+3, y+2, y+3))
    a("v_add_f32 v4, v4, v5"); a("v_add_f32 v6, v6, v7")
    a("s_nop 1")
    a("v_permlane32_swap_b32 v4, v6")
    a("v_add_f32 v4, v4, v6")
    a("v_mov_b32 v5, v4")
    a("s_nop 1")
    a("v_permlane16_swap_b32 v4, v5")
    a("v_add_f32 v4, v4, v5")
    a("v_min_u32 v4, 0xfffffffe, v4")
    a("s_mov_b32 exec_lo, 0xffff"); a("s_mov_b32 exec_hi, 0xffff")
    a("global_store_dword v14, v4, s[18:19] sc0 sc1")
    a("s_mov_b64 exec, -1")
    if stamps:
        a("s_memrealtime s[72:73]"); a("s_memtime s[74:75]")
    a("s_lshl_b32 s51, s48, 6"); a("s_add_u32 s51, s51, 32768")
    a("v_lshlrev_b32 v2, 13, v9"); a("v_lshl_add_u32 v2, v8, 2, v2"); a("v_add_u32 v2, s51, v2")
    for f in range(8):
        for k in range(0, 4, 2):
            a("ds_write2st64_b32 v2, v%d, v%d offset0:%d offset1:%d" % (AC(f,1)+k, AC(f,1)+k+1, 8*k+f, 8*(k+1)+f))
    a("s_waitcnt lgkmcnt(0)"); a("s_barrier")
    a("s_branch L_final")
    a.label("L_signal")
    a("s_waitcnt vmcnt(0)")
    a("s_lshl_b32 s51, s46, 2"); a("s_add_u32 s51, s51, 64"); a("v_mov_b32 v10, s51"); a("v_mov_b32 v11, 1")
    a("s_mov_b64 exec, 1")
    a("global_atomic_add v10, v11, s[16:17] sc1")
    a("s_mov_b64 exec, -1")
    a("s_branch L_sigdone")

    a.label("L_poll")
    a("s_mov_b32 s58, 0")
    a("s_waitcnt vmcnt(0)")
    a.label("L_pc")
    a("v_cmp_le_u32 vcc, 16, v14")
    a("s_cbranch_vccnz L_pc_ok")
    a("global_load_dword v14, v12, s[16:17] sc0 sc1")
    a("s_add_u32 s58, s58, 1"); a("s_cmp_lt_u32 s58, 0x40000")
    a("s_waitcnt vmcnt(0)")
    a("s_cbranch_scc1 L_pc")
    a.label("L_pc_ok")
    for k in range(4):
        a("global_load_dwordx2 v[%d:%d], v13, s[18:19] offset:%d sc0 sc1" % (20+2*k, 21+2*k, 512*k))
    a("s_add_u32 s58, s58, 1"); a("s_cmp_ge_u32 s58, 0x40000")
    a("s_waitcnt vmcnt(0)")
    a("s_cbranch_scc1 L_ps_ok")
    a("v_max3_u32 v18, v20, v21, v22"); a("v_max3_u32 v19, v23, v24, v25"); a("v_max3_u32 v18, v18, v26, v27"); a("v_max_u32 v18, v18, v19")
    a("v_cmp_eq_u32 vcc, -1, v18")
    a("s_cbranch_vccnz L_pc_ok")
    a.label("L_ps_ok")
    a("v_pk_add_f32 v[20:21], v[20:21], v[22:23]"); a("v_pk_add_f32 v[24:25], v[24:25], v[26:27]"); a("v_pk_add_f32 v[20:21], v[20:21], v[24:25]")
    a("v_mov_b32 v22, v20"); a("v_mov_b32 v23, v21")
    a("s_nop 1")
    a("v_permlane32_swap_b32 v20, v22"); a("v_permlane32_swap_b32 v21, v23")
    a("v_pk_add_f32 v[20:21], v[20:21], v[22:23]")
    a("v_mov_b32 v22, v20"); a("v_mov_b32 v23, v21")
    a("s_nop 1")
    a("v_permlane16_swap_b32 v20, v22"); a("v_permlane16_swap_b32 v21, v23")
    a("v_pk_add_f32 v[20:21], v[20:21], v[22:23]")
    a("s_mov_b32 s58, 0x%x" % f2u(1.0/1998.0))
    a("v_mul_f32 v20, s58, v20")
    a("v_mul_f32 v21, s58, v21")
    a("v_fma_f32 v21, -v20, v20, v21")
    a("v_max_f32 v21, 0, v21")
    a("v_add_f32 v21, 0x%x, v21" % f2u(1e-5))
    a("v_rsq_f32 v21, v21")
    a("v_lshlrev_b32 v15, 16, v15"); a("v_lshlrev_b32 v16, 16, v16"); a("v_lshlrev_b32 v17, 16, v17")
    a("v_add_f32 v20, v20, v15")
    a("v_sub_f32 v20, v15, v20")
    a("v_mul_f32 v21, v21, v16")
    a("v_fma_f32 v20, v20, v21, v17")
    a("s_lshl_b32 s58, s3, 6"); a("s_add_u32 s58, s58, 65536")
    a("v_lshlrev_b32 v10, 2, v10"); a("v_add_u32 v10, s58, v10")
    a("ds_write2_b32 v10, v21, v20 offset0:0 offset1:64")
    a.label("L_final")
    a("v_lshrrev_b32 v2, 3, v0"); a("v_and_b32 v3, 7, v0")
    a("s_lshl_b32 s58, s3, 4"); a("v_add_u32 v2, s58, v2")
    a("v_lshlrev_b32 v4, 8, v2"); a("v_lshl_add_u32 v4, v3, 5, v4")
    for t in range(2):
        a("ds_read_b128 v[%d:%d], v4 offset:%d" % (32+8*t, 35+8*t, 32768 + t*2048))
        a("ds_read_b128 v[%d:%d], v4 offset:%d" % (36+8*t, 39+8*t, 32768 + t*2048 + 16))
    a("v_lshlrev_b32 v5, 5, v3"); a("v_add_u32 v5, 65536, v5")
    a("s_mul_i32 s58, s44, 1998"); a("s_lshl_b32 s59, s45, 7"); a("s_add_u32 s58, s58, s59"); a("s_lshl_b32 s58, s58, 10")
    a("s_lshl_b32 s59, s43, 7"); a("s_add_u32 s58, s58, s59")
    a("v_lshlrev_b32 v6, 10, v2"); a("v_lshl_add_u32 v6, v3, 4, v6"); a("v_add_u32 v6, s58, v6")
    a("v_add_u32 v7, 8192, v6")
    k0 = -2.0*math.sqrt(2.0/math.pi)*math.log2(math.e)
    a("s_mov_b32 s52, 0x%x" % f2u(k0*0.044715)); a("s_mov_b32 s53, 0x%x" % f2u(k0))
    a("s_waitcnt lgkmcnt(0)"); a("s_barrier")
    if stamps:
        a("s_memrealtime s[76:77]"); a("s_memtime s[78:79]")
    a("ds_read_b128 v[16:19], v5"); a("ds_read_b128 v[24:27], v5 offset:256")
    a("ds_read_b128 v[20:23], v5 offset:16"); a("ds_read_b128 v[28:31], v5 offset:272")
    a("s_waitcnt lgkmcnt(0)")
    for t in range(2):
        Y = 32 + 8*t
        T = 48 + 8*t
        for p in range(4):
            a("v_pk_fma_f32 v[%d:%d], v[%d:%d], v[%d:%d], v[%d:%d]" % (Y+2*p, Y+2*p+1, Y+2*p, Y+2*p+1, 16+2*p, 17+2*p, 24+2*p, 25+2*p))
        for p in range(4):
            a("v_pk_mul_f32 v[%d:%d], v[%d:%d], v[%d:%d]" % (T+2*p, T+2*p+1, Y+2*p, Y+2*p+1, Y+2*p, Y+2*p+1))
        for p in range(4):
            a("v_pk_fma_f32 v[%d:%d], v[%d:%d], s[52:53], s[52:53] op_sel:[0,0,1] op_sel_hi:[1,0,1]" % (T+2*p, T+2*p+1, T+2*p, T+2*p+1))
        for p in range(4):
            a("v_pk_mul_f32 v[%d:%d], v[%d:%d], v[%d:%d]" % (T+2*p, T+2*p+1, T+2*p, T+2*p+1, Y+2*p, Y+2*p+1))
        for p in range(8):
            a("v_exp_f32 v%d, v%d" % (T+p, T+p))
        a("s_nop 0")
        for p in range(4):
            a("v_pk_add_f32 v[%d:%d], v[%d:%d], 1.0 op_sel_hi:[1,0]" % (T+2*p, T+2*p+1, T+2*p, T+2*p+1))
        for p in range(8):
            a("v_rcp_f32 v%d, v%d" % (T+p, T+p))
        a("s_nop 0")
        for p in range(4):
            a("v_pk_mul_f32 v[%d:%d], v[%d:%d], v[%d:%d]" % (Y+2*p, Y+2*p+1, Y+2*p, Y+2*p+1, T+2*p, T+2*p+1))
        for p in range(4):
            a("v_cvt_pk_bf16_f32 v%d, v%d, v%d" % (64+4*t+p, Y+2*p, Y+2*p+1))
        a("buffer_store_dwordx4 v[%d:%d], v%d, s[28:31], 0 offen" % (64+4*t, 67+4*t, 6+t))
    if stamps:
        a("s_cmp_lg_u32 s3, 4"); a("s_cbranch_scc1 L_end")
        a("s_waitcnt vmcnt(0)")
        a("s_memrealtime s[80:81]"); a("s_memtime s[82:83]"); a("s_waitcnt lgkmcnt(0)")
        a("s_lshl_b32 s58, s2, 8"); a("s_add_u32 s58, s58, 0x8000000"); a("v_mov_b32 v1, s58")
        a("s_mov_b64 exec, 1")
        if dbgst is not None:
            for idx, wg in enumerate(dbgst):
                a("s_cmp_lg_u32 s2, %d" % wg); a("s_cbranch_scc1 L_nd%d" % idx)
                a("v_mov_b32 v20, s60")
                for k in range(1, 6):
                    a("s_sub_u32 s59, s%d, s60" % (60+4*k)); a("v_mov_b32 v%d, s59" % (20+k))
                a("s_sub_u32 s59, s70, s62"); a("v_mov_b32 v26, s59")
                a("s_sub_u32 s59, s82, s62"); a("v_mov_b32 v27, s59")
                a("v_mov_b32 v2, %d" % (32*idx))
                a("global_store_dwordx4 v2, v[20:23], s[16:17]")
                a("global_store_dwordx4 v2, v[24:27], s[16:17] offset:16")
                a.label("L_nd%d" % idx)
        for k in range(6):
            for q in range(4): a("v_mov_b32 v%d, s%d" % (8+q, 60+4*k+q))
            a("global_store_dwordx4 v1, v[8:11], s[18:19] offset:%d" % (16*k))
            a("s_nop 1")
    a.label("L_end")
    a("s_endpgm")
    txt = wrap(a.text(), 256, 512, 2*BUF, vgpr=200, accum=200, sgpr=96)
    txt = txt.replace(".end_amdhsa_kernel", "  .amdhsa_float_denorm_mode_32 3\n.end_amdhsa_kernel")
    p = out_path or (name + ".s")
    open(p, "w").write(txt)
    return build(p)

if __name__ == "__main__":
    gen("v1_d", stamps=True, dbgst=[0, 133])
```

```python
import sys, math
from asmlib import *
from build import build

BUF = 74752
AEX = 32768
BOF = 33792
TAPS = [1, 3, 0, 2, 4]
SENT = 0xFFFFFFFF

def f2u(x):
    import struct
    return struct.unpack("<I", struct.pack("<f", x))[0]

def gen(name, D=4, stamps=False, out_path=None, nomfma=False, noload=False, itst=False, dbgst=None, probe=None, hold=4000):
    a = Asm()
    if stamps:
        a("s_memrealtime s[60:61]"); a("s_memtime s[62:63]")
    a("s_load_dwordx16 s[4:19], s[0:1], 0")
    a("s_cmp_ge_u32 s2, 256")
    a("s_cbranch_scc1 L_end")
    a("v_lshrrev_b32 v1, 6, v0")
    a("v_and_b32 v0, 63, v0")
    a("v_readfirstlane_b32 s3, v1")
    a("s_and_b32 s40, s2, 7")
    a("s_lshr_b32 s41, s2, 3")
    a("s_lshr_b32 s42, s40, 1"); a("s_lshl_b32 s42, s42, 3"); a("s_lshr_b32 s43, s41, 2"); a("s_add_u32 s42, s42, s43")
    a("s_and_b32 s43, s40, 1"); a("s_lshl_b32 s43, s43, 2"); a("s_and_b32 s44, s41, 3"); a("s_add_u32 s43, s43, s44")
    a("s_lshr_b32 s44, s42, 4")
    a("s_and_b32 s45, s42, 15")
    a("s_lshl_b32 s46, s44, 3"); a("s_add_u32 s46, s46, s43")
    a("s_add_u32 s47, s44, 1")
    a("s_mul_i32 s30, s47, %d" % (1998*1024)); a("s_mov_b32 s31, 0x20000")
    a("s_cmp_ge_u32 s3, 4")
    a("s_cbranch_scc1 L_consumer")

    a("s_mul_i32 s22, s47, 4096000"); a("s_mov_b32 s23, 0x20000")
    a("s_mov_b32 s26, 2621440"); a("s_mov_b32 s27, 0x20000")
    a("v_lshrrev_b32 v5, 3, v0")
    a("v_and_b32 v6, 7, v0")
    a("v_and_b32 v7, 2, v5"); a("v_lshlrev_b32 v7, 1, v7")
    a("v_bfe_u32 v8, v5, 2, 1"); a("v_lshl_or_b32 v7, v8, 1, v7")
    a("v_xor_b32 v7, v7, v6"); a("v_lshlrev_b32 v7, 4, v7")
    a("v_lshl_add_u32 v2, v5, 14, v7")
    a("v_and_b32 v7, 3, v5"); a("v_lshl_add_u32 v7, v8, 3, v7")
    a("v_and_b32 v9, 6, v5"); a("v_xor_b32 v9, v9, v6"); a("v_lshlrev_b32 v9, 4, v9")
    a("v_lshl_add_u32 v3, v7, 10, v9")
    a("v_lshrrev_b32 v7, 4, v0"); a("v_lshlrev_b32 v7, 11, v7"); a("v_lshl_add_u32 v4, v6, 4, v7")
    a("s_mul_i32 s48, s44, 4096000"); a("s_lshl_b32 s49, s45, 18"); a("s_add_u32 s48, s48, s49")
    a("s_add_u32 s50, s48, %d" % (256*1024))
    a("s_lshl_b32 s49, s3, 11"); a("s_add_u32 s48, s48, s49")
    a("s_lshl_b32 s49, s43, 7"); a("s_lshl_b32 s51, s3, 14"); a("s_add_u32 s49, s49, s51")
    a("s_lshl_b32 s52, s3, 12")
    a("s_add_u32 s53, s52, %d" % BUF)
    a("s_lshl_b32 s54, s3, 11"); a("s_add_u32 s54, s54, %d" % BOF)
    a("s_add_u32 s55, s54, %d" % BUF)
    a("s_mov_b32 s56, %d" % AEX); a("s_mov_b32 s57, %d" % (AEX+BUF))
    a("v_and_b32 v10, 15, v0")
    a("s_lshl_b32 s58, s43, 6"); a("s_lshl_b32 s59, s3, 4"); a("s_add_u32 s58, s58, s59")
    a("v_add_u32 v11, s58, v10"); a("v_lshlrev_b32 v11, 1, v11")
    a("s_lshl_b32 s58, s46, 2"); a("s_add_u32 s58, s58, 64"); a("v_mov_b32 v12, s58")
    a("s_lshl_b32 s58, s46, 13"); a("s_lshl_b32 s59, s3, 11"); a("s_add_u32 s58, s58, s59")
    a("v_lshlrev_b32 v13, 3, v0"); a("v_add_u32 v13, s58, v13")
    a("s_waitcnt lgkmcnt(0)")
    a("s_mov_b32 s20, s4"); a("s_mov_b32 s21, s5"); a("s_mov_b32 s24, s6"); a("s_mov_b32 s25, s7")
    a("s_mov_b32 s28, s14"); a("s_mov_b32 s29, s15")

    def ld(v, srd, sb, go, lb, lo):
        a("s_add_u32 m0, %s, %d" % (lb, lo))
        a("s_add_u32 s59, %s, %d" % (sb, go & 0xffffffff))
        if not noload:
            a("buffer_load_dwordx4 %s, %s, s59 offen lds" % (v, srd))
    def group(rel, ph, cur=True, nxt=True):
        odd = rel & 1
        La, Lb, Le = ("s53", "s55", "s57") if odd else ("s52", "s54", "s56")
        n = 0
        def A(par, half, st):
            for qb in range(2):
                ld("v2", "s[20:23]", "s48", par*1024 + half*8192 + qb*131072 + st*128, La, par*2048 + half*16384 + qb*1024)
            return 2
        def Bt(i, st):
            for e in range(2):
                ld("v3", "s[24:27]", "s49", i*524288 + e*4096 + st*65536, Lb, i*8192 + e*1024)
            return 2
        def extra(par, st):
            lab = a.newlabel("L_x")
            a("s_cmp_lg_u32 s3, 0"); a("s_cbranch_scc1 %s" % lab)
            a("s_mov_b64 exec, %s" % ("0xff" if par else "0x00ff00ff"))
            ld("v4", "s[20:23]", "s50", par*1024 + st*128, Le, par*512)
            a("s_mov_b64 exec, -1")
            a.label(lab)
        if ph == 0 and cur: extra(0, rel); n += Bt(3, rel); n += A(0, 0, rel)
        if ph == 1 and cur: n += Bt(0, rel); n += A(0, 1, rel)
        if ph == 2:
            if nxt: extra(1, rel+1)
            if cur: n += Bt(2, rel)
            if nxt: n += A(1, 0, rel+1)
        if ph == 3:
            if cur: n += Bt(4, rel)
            if nxt: n += A(1, 1, rel+1)
        if ph == 4 and nxt: n += Bt(1, rel+1)
        return n
    issued = []
    def cnt_after(b):
        return sum(n for g, n in issued if g > b)
    n = group(-1, 2, cur=False) + group(-1, 4, cur=False) + group(-1, 3, cur=False)
    issued.append((-1, n))
    for g in range(0, D-1):
        issued.append((g, group(g//5, g%5)))
    a("s_waitcnt vmcnt(%d)" % cnt_after(-1))
    a("s_barrier")
    issued.append((D-1, group((D-1)//5, (D-1)%5)))
    def advance():
        a("s_add_u32 s48, s48, 128"); a("s_add_u32 s50, s50, 128"); a("s_add_u32 s49, s49, 65536")
        for p, q in (("s52","s53"),("s54","s55"),("s56","s57")):
            a("s_mov_b32 s59, %s" % p); a("s_mov_b32 %s, %s" % (p, q)); a("s_mov_b32 %s, s59" % q)
    NLOOP = 6
    a("s_mov_b32 s58, 0")
    a.label("L_lloop")
    waits0 = []
    for ph in range(5):
        w = cnt_after(ph); waits0.append(w)
        a("s_waitcnt vmcnt(%d)" % w); a("s_barrier")
        g = ph + D
        issued.append((g, group(g//5, g%5)))
    advance()
    a("s_add_u32 s58, s58, 1"); a("s_cmp_lt_u32 s58, %d" % NLOOP); a("s_cbranch_scc1 L_lloop")
    gc = {g % 5: n for g, n in issued if g >= 0}
    for it in range(1, NLOOP):
        for ph in range(5):
            assert cnt_after(5*it+ph) == waits0[ph]
            g = 5*it + ph + D
            issued.append((g, gc[g % 5]))
    done_misc = False
    for it in range(NLOOP, 8):
        for ph in range(5):
            b = 5*it + ph
            a("s_waitcnt vmcnt(%d)" % cnt_after(b)); a("s_barrier")
            g = b + D
            if g <= 38:
                issued.append((g, group(g//5 - NLOOP, g % 5, nxt=(g//5 < 7))))
            elif not done_misc:
                done_misc = True
                a("global_load_dword v14, v12, s[16:17] sc0 sc1")
                a("global_load_ushort v15, v11, s[8:9]")
                a("global_load_ushort v16, v11, s[10:11]")
                a("global_load_ushort v17, v11, s[12:13]")
                issued.append((100, 4))
    a("s_barrier")
    a("s_barrier")
    a("s_branch L_poll")

    a.label("L_consumer")
    XA = lambda j: 16 + 4*j
    XB = lambda i, cf: 92 + 8*i + 4*cf
    AC = lambda f, cf: 132 + 32*cf + 4*f
    a("s_sub_u32 s48, s3, 4")
    a("s_and_b32 s49, s48, 1")
    a("s_lshr_b32 s50, s48, 1")
    a("v_and_b32 v8, 15, v0")
    a("v_lshrrev_b32 v9, 4, v0")
    a("s_lshl_b32 s51, s49, 2")
    a("v_add_u32 v10, s51, v9")
    def swz(dst, q):
        a("v_and_b32 v11, 2, %s" % q); a("v_lshlrev_b32 v11, 1, v11")
        a("v_bfe_u32 v12, %s, 2, 1" % q); a("v_lshl_or_b32 v11, v12, 1, v11")
        a("v_xor_b32 v11, v11, v10"); a("v_lshlrev_b32 v11, 4, v11")
        a("v_lshl_add_u32 %s, %s, 7, v11" % (dst, q))
    swz("v2", "v8")
    a("v_add_u32 v13, 1, v8")
    swz("v3", "v13")
    a("v_lshlrev_b32 v11, 4, v10")
    a("v_cmp_eq_u32 vcc, 15, v8")
    a("v_add_u32 v4, 2048, v3"); a("v_add_u32 v5, 4096, v3")
    a("v_add_u32 v12, %d, v11" % (AEX)); a("v_cndmask_b32 v3, v3, v12, vcc")
    a("v_add_u32 v12, %d, v11" % (AEX+512)); a("v_cndmask_b32 v4, v4, v12, vcc")
    a("v_add_u32 v12, %d, v11" % (AEX+256)); a("v_cndmask_b32 v5, v5, v12, vcc")
    a("v_lshrrev_b32 v11, 2, v8"); a("v_and_b32 v12, 1, v9"); a("v_lshl_add_u32 v11, v12, 2, v11")
    a("v_lshrrev_b32 v12, 1, v9"); a("s_lshl_b32 s51, s49, 1"); a("v_add_u32 v12, s51, v12")
    a("v_lshlrev_b32 v12, 11, v12"); a("v_lshl_add_u32 v12, v11, 7, v12")
    a("v_bfe_u32 v13, v8, 1, 1")
    a("s_lshl_b32 s51, s50, 2"); a("s_lshl_b32 s52, s49, 1"); a("s_add_u32 s51, s51, s52")
    a("v_add_u32 v13, s51, v13"); a("v_and_b32 v11, 6, v11"); a("v_xor_b32 v13, v13, v11")
    a("v_lshl_add_u32 v12, v13, 4, v12")
    a("v_and_b32 v13, 1, v8"); a("v_lshl_add_u32 v12, v13, 3, v12")
    a("v_add_u32 v7, %d, v12" % BOF)
    a("v_xor_b32 v6, 32, v7")
    for r in (2,3,4,5,6,7):
        a("v_add_u32 v%d, %d, v%d" % (r, BUF, r))
    a("s_mov_b32 s53, %d" % ((-BUF) & 0xffffffff))
    for r in range(132, 196):
        a("v_mov_b32 v%d, 0" % r)
    a("s_lshl_b32 s54, s46, 13"); a("s_lshl_b32 s55, s45, 7"); a("s_add_u32 s54, s54, s55")
    a("v_lshlrev_b32 v14, 3, v8"); a("v_add_u32 v14, s54, v14")
    a("v_lshl_add_u32 v15, v9, 11, v14")
    a("s_lshl_b32 s55, s48, 11"); a("v_add_u32 v14, s55, v14")
    a("v_lshrrev_b32 v11, 5, v0"); a("v_lshl_add_u32 v14, v11, 2, v14")
    a("s_cmp_eq_u32 s48, 0"); a("s_cselect_b32 s56, 1, 99")
    a("s_waitcnt lgkmcnt(0)")
    a("s_mov_b32 s28, s14"); a("s_mov_b32 s29, s15")
    a("s_cbranch_scc0 L_noclear")
    a("v_mov_b32 v10, -1"); a("v_mov_b32 v11, -1")
    a("global_store_dwordx2 v15, v[10:11], s[18:19] sc0 sc1")
    a.label("L_noclear")
    def rdA(j):
        if j < 16: return "ds_read_b128 v[%d:%d], v2 offset:%d" % (XA(j), XA(j)+3, j*2048)
        return "ds_read_b128 v[%d:%d], v%d" % (XA(j), XA(j)+3, 3 + j - 16)
    def rdB(i):
        o = []
        for cf in range(2):
            for e in range(2):
                o.append("ds_read_b64_tr_b16 v[%d:%d], v%d offset:%d" % (XB(i,cf)+2*e, XB(i,cf)+2*e+1, 6+cf, i*8192 + e*1024))
        return o
    def toggle():
        return ["v_add_u32 v%d, s53, v%d" % (r, r) for r in (2,3,4,5,6,7)] + ["s_sub_u32 s53, 0, s53"]
    a("s_barrier")
    if stamps:
        a("s_memrealtime s[64:65]"); a("s_memtime s[66:67]")
    for s in rdB(1) + [rdA(j) for j in (1,3,5,7,9,11,13,15,17)] + toggle(): a(s)
    a("s_mov_b32 s57, 0")
    a(".p2align 3")
    a.label("L_cloop")
    RS = [rdB(3) + [rdA(j) for j in (0,16,2,18,4,6)],
          rdB(0) + [rdA(j) for j in (8,10,12,14)],
          rdB(2) + [rdA(j) for j in (1,17,3,5,7)],
          rdB(4) + [rdA(j) for j in (9,11,13,15)],
          rdB(1) + toggle()]
    for ph in range(5):
        i = TAPS[ph]
        a("s_waitcnt lgkmcnt(0)"); a("s_barrier")
        order = [(f, cf) for f in range(8) for cf in range(2)] if ph < 4 else [(f, cf) for cf in range(2) for f in range(8)]
        fill = list(RS[ph])
        for k, (f, cf) in enumerate(order):
            if not nomfma:
                a("v_mfma_f32_16x16x32_bf16 v[%d:%d], v[%d:%d], v[%d:%d], v[%d:%d]" % (AC(f,cf), AC(f,cf)+3, XA(2*f+i), XA(2*f+i)+3, XB(i,cf), XB(i,cf)+3, AC(f,cf), AC(f,cf)+3))
            if fill: a(fill.pop(0))
        assert not fill
    if itst:
        a("s_cmp_lg_u32 s3, 4"); a("s_cbranch_scc1 L_nost")
        a("s_memrealtime s[84:85]"); a("s_memtime s[86:87]"); a("s_waitcnt lgkmcnt(0)")
        a("s_lshl_b32 s58, s2, 8"); a("s_add_u32 s58, s58, 0x8000060"); a("s_lshl_b32 s59, s57, 4"); a("s_add_u32 s58, s58, s59"); a("v_mov_b32 v1, s58")
        for q in range(4): a("v_mov_b32 v%d, s%d" % (196+q, 84+q))
        a("s_mov_b64 exec, 1")
        a("global_store_dwordx4 v1, v[196:199], s[18:19]")
        a("s_mov_b64 exec, -1")
        a.label("L_nost")
    a("s_cmp_eq_u32 s57, s56"); a("s_cbranch_scc1 L_signal")
    a.label("L_sigdone")
    a("s_add_u32 s57, s57, 1"); a("s_cmp_lt_u32 s57, 8"); a("s_cbranch_scc1 L_cloop")
    if stamps:
        a("s_memrealtime s[68:69]"); a("s_memtime s[70:71]")
    a("s_lshl_b32 s51, s48, 13"); a("v_lshlrev_b32 v2, 4, v0"); a("v_add_u32 v2, s51, v2")
    a("v_xor_b32 v3, 0x2000, v2")
    for f in range(8):
        a("ds_write_b128 v2, v[%d:%d] offset:%d" % (AC(f,0), AC(f,0)+3, f*1024))
    a("s_waitcnt lgkmcnt(0)"); a("s_barrier")
    for f in range(8):
        a("ds_read_b128 v[%d:%d], v3 offset:%d" % (16+4*f, 19+4*f, f*1024))
    a("s_cmp_eq_u32 s45, 15"); a("s_cselect_b32 s53, 0xffff, 0"); a("s_mov_b32 s52, 0")
    for f in range(8):
        a("s_waitcnt lgkmcnt(%d)" % (7-f))
        y = AC(f,1)
        a("v_pk_add_f32 v[%d:%d], v[%d:%d], v[%d:%d]" % (y, y+1, y, y+1, 16+4*f, 17+4*f))
        a("v_pk_add_f32 v[%d:%d], v[%d:%d], v[%d:%d]" % (y+2, y+3, y+2, y+3, 18+4*f, 19+4*f))
        if f >= 6:
            a("v_cndmask_b32 v%d, v%d, 0, s[52:53]" % (y+1, y+1))
        if f == 0:
            a("v_pk_add_f32 v[4:5], v[%d:%d], v[%d:%d]" % (y, y+1, y+2, y+3))
            a("v_pk_mul_f32 v[6:7], v[%d:%d], v[%d:%d]" % (y, y+1, y, y+1))
        else:
            a("v_pk_add_f32 v[4:5], v[4:5], v[%d:%d]" % (y, y+1))
            a("v_pk_fma_f32 v[6:7], v[%d:%d], v[%d:%d], v[6:7]" % (y, y+1, y, y+1))
            a("v_pk_add_f32 v[4:5], v[4:5], v[%d:%d]" % (y+2, y+3))
        a("v_pk_fma_f32 v[6:7], v[%d:%d], v[%d:%d], v[6:7]" % (y+2, y+3, y+2, y+3))
    a("v_add_f32 v4, v4, v5"); a("v_add_f32 v6, v6, v7")
    a("s_nop 1")
    a("v_permlane32_swap_b32 v4, v6")
    a("v_add_f32 v4, v4, v6")
    a("v_mov_b32 v5, v4")
    a("s_nop 1")
    a("v_permlane16_swap_b32 v4, v5")
    a("v_add_f32 v4, v4, v5")
    a("v_min_u32 v4, 0xfffffffe, v4")
    a("s_mov_b32 exec_lo, 0xffff"); a("s_mov_b32 exec_hi, 0xffff")
    a("global_store_dword v14, v4, s[18:19] sc0 sc1")
    a("s_mov_b64 exec, -1")
    if stamps:
        a("s_memrealtime s[72:73]"); a("s_memtime s[74:75]")
    a("s_lshl_b32 s51, s48, 6"); a("s_add_u32 s51, s51, 32768")
    a("v_lshlrev_b32 v2, 13, v9"); a("v_lshl_add_u32 v2, v8, 2, v2"); a("v_add_u32 v2, s51, v2")
    for f in range(8):
        for k in range(0, 4, 2):
            a("ds_write2st64_b32 v2, v%d, v%d offset0:%d offset1:%d" % (AC(f,1)+k, AC(f,1)+k+1, 8*k+f, 8*(k+1)+f))
    a("s_waitcnt lgkmcnt(0)"); a("s_barrier")
    a("s_branch L_final")
    a.label("L_signal")
    a("s_waitcnt vmcnt(0)")
    a("s_lshl_b32 s51, s46, 2"); a("s_add_u32 s51, s51, 64"); a("v_mov_b32 v10, s51"); a("v_mov_b32 v11, 1")
    a("s_mov_b64 exec, 1")
    a("global_atomic_add v10, v11, s[16:17] sc1")
    a("s_mov_b64 exec, -1")
    a("s_branch L_sigdone")

    a.label("L_poll")
    a("s_mov_b32 s58, 0")
    a("s_waitcnt vmcnt(0)")
    a.label("L_pc")
    a("v_cmp_le_u32 vcc, 16, v14")
    a("s_cbranch_vccnz L_pc_ok")
    a("global_load_dword v14, v12, s[16:17] sc0 sc1")
    a("s_add_u32 s58, s58, 1"); a("s_cmp_lt_u32 s58, 0x40000")
    a("s_waitcnt vmcnt(0)")
    a("s_cbranch_scc1 L_pc")
    a.label("L_pc_ok")
    for k in range(4):
        a("global_load_dwordx2 v[%d:%d], v13, s[18:19] offset:%d sc0 sc1" % (20+2*k, 21+2*k, 512*k))
    a("s_add_u32 s58, s58, 1"); a("s_cmp_ge_u32 s58, 0x40000")
    a("s_waitcnt vmcnt(0)")
    a("s_cbranch_scc1 L_ps_ok")
    a("v_max3_u32 v18, v20, v21, v22"); a("v_max3_u32 v19, v23, v24, v25"); a("v_max3_u32 v18, v18, v26, v27"); a("v_max_u32 v18, v18, v19")
    a("v_cmp_eq_u32 vcc, -1, v18")
    a("s_cbranch_vccnz L_pc_ok")
    a.label("L_ps_ok")
    a("v_pk_add_f32 v[20:21], v[20:21], v[22:23]"); a("v_pk_add_f32 v[24:25], v[24:25], v[26:27]"); a("v_pk_add_f32 v[20:21], v[20:21], v[24:25]")
    a("v_mov_b32 v22, v20"); a("v_mov_b32 v23, v21")
    a("s_nop 1")
    a("v_permlane32_swap_b32 v20, v22"); a("v_permlane32_swap_b32 v21, v23")
    a("v_pk_add_f32 v[20:21], v[20:21], v[22:23]")
    a("v_mov_b32 v22, v20"); a("v_mov_b32 v23, v21")
    a("s_nop 1")
    a("v_permlane16_swap_b32 v20, v22"); a("v_permlane16_swap_b32 v21, v23")
    a("v_pk_add_f32 v[20:21], v[20:21], v[22:23]")
    a("s_mov_b32 s58, 0x%x" % f2u(1.0/1998.0))
    a("v_mul_f32 v20, s58, v20")
    a("v_mul_f32 v21, s58, v21")
    a("v_fma_f32 v21, -v20, v20, v21")
    a("v_max_f32 v21, 0, v21")
    a("v_add_f32 v21, 0x%x, v21" % f2u(1e-5))
    a("v_rsq_f32 v21, v21")
    a("v_lshlrev_b32 v15, 16, v15"); a("v_lshlrev_b32 v16, 16, v16"); a("v_lshlrev_b32 v17, 16, v17")
    a("v_add_f32 v20, v20, v15")
    a("v_sub_f32 v20, v15, v20")
    a("v_mul_f32 v21, v21, v16")
    a("v_fma_f32 v20, v20, v21, v17")
    a("s_lshl_b32 s58, s3, 6"); a("s_add_u32 s58, s58, 65536")
    a("v_lshlrev_b32 v10, 2, v10"); a("v_add_u32 v10, s58, v10")
    a("ds_write2_b32 v10, v21, v20 offset0:0 offset1:64")
    a.label("L_final")
    a("v_lshrrev_b32 v2, 3, v0"); a("v_and_b32 v3, 7, v0")
    a("s_lshl_b32 s58, s3, 4"); a("v_add_u32 v2, s58, v2")
    a("v_lshlrev_b32 v4, 8, v2"); a("v_lshl_add_u32 v4, v3, 5, v4")
    for t in range(2):
        a("ds_read_b128 v[%d:%d], v4 offset:%d" % (32+8*t, 35+8*t, 32768 + t*2048))
        a("ds_read_b128 v[%d:%d], v4 offset:%d" % (36+8*t, 39+8*t, 32768 + t*2048 + 16))
    a("v_lshlrev_b32 v5, 5, v3"); a("v_add_u32 v5, 65536, v5")
    a("s_mul_i32 s58, s44, 1998"); a("s_lshl_b32 s59, s45, 7"); a("s_add_u32 s58, s58, s59"); a("s_lshl_b32 s58, s58, 10")
    a("s_lshl_b32 s59, s43, 7"); a("s_add_u32 s58, s58, s59")
    a("v_lshlrev_b32 v6, 10, v2"); a("v_lshl_add_u32 v6, v3, 4, v6"); a("v_add_u32 v6, s58, v6")
    a("v_add_u32 v7, 8192, v6")
    k0 = -2.0*math.sqrt(2.0/math.pi)*math.log2(math.e)
    a("s_mov_b32 s52, 0x%x" % f2u(k0*0.044715)); a("s_mov_b32 s53, 0x%x" % f2u(k0))
    a("s_waitcnt lgkmcnt(0)"); a("s_barrier")
    if stamps:
        a("s_memrealtime s[76:77]"); a("s_memtime s[78:79]")
    a("ds_read_b128 v[16:19], v5"); a("ds_read_b128 v[24:27], v5 offset:256")
    a("ds_read_b128 v[20:23], v5 offset:16"); a("ds_read_b128 v[28:31], v5 offset:272")
    a("s_waitcnt lgkmcnt(0)")
    for t in range(2):
        Y = 32 + 8*t
        T = 48 + 8*t
        for p in range(4):
            a("v_pk_fma_f32 v[%d:%d], v[%d:%d], v[%d:%d], v[%d:%d]" % (Y+2*p, Y+2*p+1, Y+2*p, Y+2*p+1, 16+2*p, 17+2*p, 24+2*p, 25+2*p))
        for p in range(4):
            a("v_pk_mul_f32 v[%d:%d], v[%d:%d], v[%d:%d]" % (T+2*p, T+2*p+1, Y+2*p, Y+2*p+1, Y+2*p, Y+2*p+1))
        for p in range(4):
            a("v_pk_fma_f32 v[%d:%d], v[%d:%d], s[52:53], s[52:53] op_sel:[0,0,1] op_sel_hi:[1,0,1]" % (T+2*p, T+2*p+1, T+2*p, T+2*p+1))
        for p in range(4):
            a("v_pk_mul_f32 v[%d:%d], v[%d:%d], v[%d:%d]" % (T+2*p, T+2*p+1, T+2*p, T+2*p+1, Y+2*p, Y+2*p+1))
        for p in range(8):
            a("v_exp_f32 v%d, v%d" % (T+p, T+p))
        a("s_nop 0")
        for p in range(4):
            a("v_pk_add_f32 v[%d:%d], v[%d:%d], 1.0 op_sel_hi:[1,0]" % (T+2*p, T+2*p+1, T+2*p, T+2*p+1))
        for p in range(8):
            a("v_rcp_f32 v%d, v%d" % (T+p, T+p))
        a("s_nop 0")
        for p in range(4):
            a("v_pk_mul_f32 v[%d:%d], v[%d:%d], v[%d:%d]" % (Y+2*p, Y+2*p+1, Y+2*p, Y+2*p+1, T+2*p, T+2*p+1))
        for p in range(4):
            a("v_cvt_pk_bf16_f32 v%d, v%d, v%d" % (64+4*t+p, Y+2*p, Y+2*p+1))
        a("buffer_store_dwordx4 v[%d:%d], v%d, s[28:31], 0 offen" % (64+4*t, 67+4*t, 6+t))
    if stamps:
        a("s_cmp_lg_u32 s3, 4"); a("s_cbranch_scc1 L_end")
        a("s_waitcnt vmcnt(0)")
        a("s_memrealtime s[80:81]"); a("s_memtime s[82:83]"); a("s_waitcnt lgkmcnt(0)")
        a("s_lshl_b32 s58, s2, 8"); a("s_add_u32 s58, s58, 0x8000000"); a("v_mov_b32 v1, s58")
        a("s_mov_b64 exec, 1")
        if probe is not None:
            j, k = probe
            a("s_sub_u32 s59, s%d, s%d" % (60+4*k, 60+4*j)); a("s_lshl_b32 s59, s59, 2"); a("s_add_u32 s59, s59, %d" % hold)
            a.label("L_probe")
            a("s_memrealtime s[84:85]"); a("s_waitcnt lgkmcnt(0)")
            a("s_sub_u32 s86, s84, s60"); a("s_cmp_lt_u32 s86, s59"); a("s_cbranch_scc1 L_probe")
        if dbgst is not None:
            for idx, wg in enumerate(dbgst):
                a("s_cmp_lg_u32 s2, %d" % wg); a("s_cbranch_scc1 L_nd%d" % idx)
                a("v_mov_b32 v20, s60")
                for k in range(1, 6):
                    a("s_sub_u32 s59, s%d, s60" % (60+4*k)); a("v_mov_b32 v%d, s59" % (20+k))
                a("s_sub_u32 s59, s70, s62"); a("v_mov_b32 v26, s59")
                a("s_sub_u32 s59, s82, s62"); a("v_mov_b32 v27, s59")
                a("v_mov_b32 v2, %d" % (32*idx))
                a("global_store_dwordx4 v2, v[20:23], s[16:17]")
                a("global_store_dwordx4 v2, v[24:27], s[16:17] offset:16")
                a.label("L_nd%d" % idx)
        for k in range(6):
            for q in range(4): a("v_mov_b32 v%d, s%d" % (8+q, 60+4*k+q))
            a("global_store_dwordx4 v1, v[8:11], s[18:19] offset:%d" % (16*k))
            a("s_nop 1")
    a.label("L_end")
    a("s_endpgm")
    txt = wrap(a.text(), 256, 512, 2*BUF, vgpr=200, accum=200, sgpr=96)
    txt = txt.replace(".end_amdhsa_kernel", "  .amdhsa_float_denorm_mode_32 3\n.end_amdhsa_kernel")
    p = out_path or (name + ".s")
    open(p, "w").write(txt)
    return build(p)

if __name__ == "__main__":
    for h in (2000, 4000, 8000, 16000):
        gen("h%d" % h, stamps=True, probe=(0,0), hold=h, out_path="h%d.s" % h)
```

```python
import sys, math
from asmlib import *
from build import build

BUF = 74752
AEX = 32768
BOF = 33792
TAPS = [1, 3, 0, 2, 4]
SENT = 0xFFFFFFFF

def f2u(x):
    import struct
    return struct.unpack("<I", struct.pack("<f", x))[0]

def gen(name, D=4, stamps=False, out_path=None, nomfma=False, noload=False, itst=False, dbgst=None, probe=None):
    a = Asm()
    if stamps:
        a("s_memrealtime s[60:61]"); a("s_memtime s[62:63]")
    a("s_load_dwordx16 s[4:19], s[0:1], 0")
    a("s_cmp_ge_u32 s2, 256")
    a("s_cbranch_scc1 L_end")
    a("v_lshrrev_b32 v1, 6, v0")
    a("v_and_b32 v0, 63, v0")
    a("v_readfirstlane_b32 s3, v1")
    a("s_and_b32 s40, s2, 7")
    a("s_lshr_b32 s41, s2, 3")
    a("s_lshr_b32 s42, s40, 1"); a("s_lshl_b32 s42, s42, 3"); a("s_lshr_b32 s43, s41, 2"); a("s_add_u32 s42, s42, s43")
    a("s_and_b32 s43, s40, 1"); a("s_lshl_b32 s43, s43, 2"); a("s_and_b32 s44, s41, 3"); a("s_add_u32 s43, s43, s44")
    a("s_lshr_b32 s44, s42, 4")
    a("s_and_b32 s45, s42, 15")
    a("s_lshl_b32 s46, s44, 3"); a("s_add_u32 s46, s46, s43")
    a("s_add_u32 s47, s44, 1")
    a("s_mul_i32 s30, s47, %d" % (1998*1024)); a("s_mov_b32 s31, 0x20000")
    a("s_cmp_ge_u32 s3, 4")
    a("s_cbranch_scc1 L_consumer")

    a("s_mul_i32 s22, s47, 4096000"); a("s_mov_b32 s23, 0x20000")
    a("s_mov_b32 s26, 2621440"); a("s_mov_b32 s27, 0x20000")
    a("v_lshrrev_b32 v5, 3, v0")
    a("v_and_b32 v6, 7, v0")
    a("v_and_b32 v7, 2, v5"); a("v_lshlrev_b32 v7, 1, v7")
    a("v_bfe_u32 v8, v5, 2, 1"); a("v_lshl_or_b32 v7, v8, 1, v7")
    a("v_xor_b32 v7, v7, v6"); a("v_lshlrev_b32 v7, 4, v7")
    a("v_lshl_add_u32 v2, v5, 14, v7")
    a("v_and_b32 v7, 3, v5"); a("v_lshl_add_u32 v7, v8, 3, v7")
    a("v_and_b32 v9, 6, v5"); a("v_xor_b32 v9, v9, v6"); a("v_lshlrev_b32 v9, 4, v9")
    a("v_lshl_add_u32 v3, v7, 10, v9")
    a("v_lshrrev_b32 v7, 4, v0"); a("v_lshlrev_b32 v7, 11, v7"); a("v_lshl_add_u32 v4, v6, 4, v7")
    a("s_mul_i32 s48, s44, 4096000"); a("s_lshl_b32 s49, s45, 18"); a("s_add_u32 s48, s48, s49")
    a("s_add_u32 s50, s48, %d" % (256*1024))
    a("s_lshl_b32 s49, s3, 11"); a("s_add_u32 s48, s48, s49")
    a("s_lshl_b32 s49, s43, 7"); a("s_lshl_b32 s51, s3, 14"); a("s_add_u32 s49, s49, s51")
    a("s_lshl_b32 s52, s3, 12")
    a("s_add_u32 s53, s52, %d" % BUF)
    a("s_lshl_b32 s54, s3, 11"); a("s_add_u32 s54, s54, %d" % BOF)
    a("s_add_u32 s55, s54, %d" % BUF)
    a("s_mov_b32 s56, %d" % AEX); a("s_mov_b32 s57, %d" % (AEX+BUF))
    a("v_and_b32 v10, 15, v0")
    a("s_lshl_b32 s58, s43, 6"); a("s_lshl_b32 s59, s3, 4"); a("s_add_u32 s58, s58, s59")
    a("v_add_u32 v11, s58, v10"); a("v_lshlrev_b32 v11, 1, v11")
    a("s_lshl_b32 s58, s46, 2"); a("s_add_u32 s58, s58, 64"); a("v_mov_b32 v12, s58")
    a("s_lshl_b32 s58, s46, 13"); a("s_lshl_b32 s59, s3, 11"); a("s_add_u32 s58, s58, s59")
    a("v_lshlrev_b32 v13, 3, v0"); a("v_add_u32 v13, s58, v13")
    a("s_waitcnt lgkmcnt(0)")
    a("s_mov_b32 s20, s4"); a("s_mov_b32 s21, s5"); a("s_mov_b32 s24, s6"); a("s_mov_b32 s25, s7")
    a("s_mov_b32 s28, s14"); a("s_mov_b32 s29, s15")

    def ld(v, srd, sb, go, lb, lo):
        a("s_add_u32 m0, %s, %d" % (lb, lo))
        a("s_add_u32 s59, %s, %d" % (sb, go & 0xffffffff))
        if not noload:
            a("buffer_load_dwordx4 %s, %s, s59 offen lds" % (v, srd))
    def group(rel, ph, cur=True, nxt=True):
        odd = rel & 1
        La, Lb, Le = ("s53", "s55", "s57") if odd else ("s52", "s54", "s56")
        n = 0
        def A(par, half, st):
            for qb in range(2):
                ld("v2", "s[20:23]", "s48", par*1024 + half*8192 + qb*131072 + st*128, La, par*2048 + half*16384 + qb*1024)
            return 2
        def Bt(i, st):
            for e in range(2):
                ld("v3", "s[24:27]", "s49", i*524288 + e*4096 + st*65536, Lb, i*8192 + e*1024)
            return 2
        def extra(par, st):
            lab = a.newlabel("L_x")
            a("s_cmp_lg_u32 s3, 0"); a("s_cbranch_scc1 %s" % lab)
            a("s_mov_b64 exec, %s" % ("0xff" if par else "0x00ff00ff"))
            ld("v4", "s[20:23]", "s50", par*1024 + st*128, Le, par*512)
            a("s_mov_b64 exec, -1")
            a.label(lab)
        if ph == 0 and cur: extra(0, rel); n += Bt(3, rel); n += A(0, 0, rel)
        if ph == 1 and cur: n += Bt(0, rel); n += A(0, 1, rel)
        if ph == 2:
            if nxt: extra(1, rel+1)
            if cur: n += Bt(2, rel)
            if nxt: n += A(1, 0, rel+1)
        if ph == 3:
            if cur: n += Bt(4, rel)
            if nxt: n += A(1, 1, rel+1)
        if ph == 4 and nxt: n += Bt(1, rel+1)
        return n
    issued = []
    def cnt_after(b):
        return sum(n for g, n in issued if g > b)
    n = group(-1, 2, cur=False) + group(-1, 4, cur=False) + group(-1, 3, cur=False)
    issued.append((-1, n))
    for g in range(0, D-1):
        issued.append((g, group(g//5, g%5)))
    a("s_waitcnt vmcnt(%d)" % cnt_after(-1))
    a("s_barrier")
    issued.append((D-1, group((D-1)//5, (D-1)%5)))
    def advance():
        a("s_add_u32 s48, s48, 128"); a("s_add_u32 s50, s50, 128"); a("s_add_u32 s49, s49, 65536")
        for p, q in (("s52","s53"),("s54","s55"),("s56","s57")):
            a("s_mov_b32 s59, %s" % p); a("s_mov_b32 %s, %s" % (p, q)); a("s_mov_b32 %s, s59" % q)
    NLOOP = 6
    a("s_mov_b32 s58, 0")
    a.label("L_lloop")
    waits0 = []
    for ph in range(5):
        w = cnt_after(ph); waits0.append(w)
        a("s_waitcnt vmcnt(%d)" % w); a("s_barrier")
        g = ph + D
        issued.append((g, group(g//5, g%5)))
    advance()
    a("s_add_u32 s58, s58, 1"); a("s_cmp_lt_u32 s58, %d" % NLOOP); a("s_cbranch_scc1 L_lloop")
    gc = {g % 5: n for g, n in issued if g >= 0}
    for it in range(1, NLOOP):
        for ph in range(5):
            assert cnt_after(5*it+ph) == waits0[ph]
            g = 5*it + ph + D
            issued.append((g, gc[g % 5]))
    done_misc = False
    for it in range(NLOOP, 8):
        for ph in range(5):
            b = 5*it + ph
            a("s_waitcnt vmcnt(%d)" % cnt_after(b)); a("s_barrier")
            g = b + D
            if g <= 38:
                issued.append((g, group(g//5 - NLOOP, g % 5, nxt=(g//5 < 7))))
            elif not done_misc:
                done_misc = True
                a("global_load_dword v14, v12, s[16:17] sc0 sc1")
                a("global_load_ushort v15, v11, s[8:9]")
                a("global_load_ushort v16, v11, s[10:11]")
                a("global_load_ushort v17, v11, s[12:13]")
                issued.append((100, 4))
    a("s_barrier")
    a("s_barrier")
    a("s_branch L_poll")

    a.label("L_consumer")
    XA = lambda j: 16 + 4*j
    XB = lambda i, cf: 92 + 8*i + 4*cf
    AC = lambda f, cf: 132 + 32*cf + 4*f
    a("s_sub_u32 s48, s3, 4")
    a("s_and_b32 s49, s48, 1")
    a("s_lshr_b32 s50, s48, 1")
    a("v_and_b32 v8, 15, v0")
    a("v_lshrrev_b32 v9, 4, v0")
    a("s_lshl_b32 s51, s49, 2")
    a("v_add_u32 v10, s51, v9")
    def swz(dst, q):
        a("v_and_b32 v11, 2, %s" % q); a("v_lshlrev_b32 v11, 1, v11")
        a("v_bfe_u32 v12, %s, 2, 1" % q); a("v_lshl_or_b32 v11, v12, 1, v11")
        a("v_xor_b32 v11, v11, v10"); a("v_lshlrev_b32 v11, 4, v11")
        a("v_lshl_add_u32 %s, %s, 7, v11" % (dst, q))
    swz("v2", "v8")
    a("v_add_u32 v13, 1, v8")
    swz("v3", "v13")
    a("v_lshlrev_b32 v11, 4, v10")
    a("v_cmp_eq_u32 vcc, 15, v8")
    a("v_add_u32 v4, 2048, v3"); a("v_add_u32 v5, 4096, v3")
    a("v_add_u32 v12, %d, v11" % (AEX)); a("v_cndmask_b32 v3, v3, v12, vcc")
    a("v_add_u32 v12, %d, v11" % (AEX+512)); a("v_cndmask_b32 v4, v4, v12, vcc")
    a("v_add_u32 v12, %d, v11" % (AEX+256)); a("v_cndmask_b32 v5, v5, v12, vcc")
    a("v_lshrrev_b32 v11, 2, v8"); a("v_and_b32 v12, 1, v9"); a("v_lshl_add_u32 v11, v12, 2, v11")
    a("v_lshrrev_b32 v12, 1, v9"); a("s_lshl_b32 s51, s49, 1"); a("v_add_u32 v12, s51, v12")
    a("v_lshlrev_b32 v12, 11, v12"); a("v_lshl_add_u32 v12, v11, 7, v12")
    a("v_bfe_u32 v13, v8, 1, 1")
    a("s_lshl_b32 s51, s50, 2"); a("s_lshl_b32 s52, s49, 1"); a("s_add_u32 s51, s51, s52")
    a("v_add_u32 v13, s51, v13"); a("v_and_b32 v11, 6, v11"); a("v_xor_b32 v13, v13, v11")
    a("v_lshl_add_u32 v12, v13, 4, v12")
    a("v_and_b32 v13, 1, v8"); a("v_lshl_add_u32 v12, v13, 3, v12")
    a("v_add_u32 v7, %d, v12" % BOF)
    a("v_xor_b32 v6, 32, v7")
    for r in (2,3,4,5,6,7):
        a("v_add_u32 v%d, %d, v%d" % (r, BUF, r))
    a("s_mov_b32 s53, %d" % ((-BUF) & 0xffffffff))
    for r in range(132, 196):
        a("v_mov_b32 v%d, 0" % r)
    a("s_lshl_b32 s54, s46, 13"); a("s_lshl_b32 s55, s45, 7"); a("s_add_u32 s54, s54, s55")
    a("v_lshlrev_b32 v14, 3, v8"); a("v_add_u32 v14, s54, v14")
    a("v_lshl_add_u32 v15, v9, 11, v14")
    a("s_lshl_b32 s55, s48, 11"); a("v_add_u32 v14, s55, v14")
    a("v_lshrrev_b32 v11, 5, v0"); a("v_lshl_add_u32 v14, v11, 2, v14")
    a("s_cmp_eq_u32 s48, 0"); a("s_cselect_b32 s56, 1, 99")
    a("s_waitcnt lgkmcnt(0)")
    a("s_mov_b32 s28, s14"); a("s_mov_b32 s29, s15")
    a("s_cbranch_scc0 L_noclear")
    a("v_mov_b32 v10, -1"); a("v_mov_b32 v11, -1")
    a("global_store_dwordx2 v15, v[10:11], s[18:19] sc0 sc1")
    a.label("L_noclear")
    def rdA(j):
        if j < 16: return "ds_read_b128 v[%d:%d], v2 offset:%d" % (XA(j), XA(j)+3, j*2048)
        return "ds_read_b128 v[%d:%d], v%d" % (XA(j), XA(j)+3, 3 + j - 16)
    def rdB(i):
        o = []
        for cf in range(2):
            for e in range(2):
                o.append("ds_read_b64_tr_b16 v[%d:%d], v%d offset:%d" % (XB(i,cf)+2*e, XB(i,cf)+2*e+1, 6+cf, i*8192 + e*1024))
        return o
    def toggle():
        return ["v_add_u32 v%d, s53, v%d" % (r, r) for r in (2,3,4,5,6,7)] + ["s_sub_u32 s53, 0, s53"]
    a("s_barrier")
    if stamps:
        a("s_memrealtime s[64:65]"); a("s_memtime s[66:67]")
    for s in rdB(1) + [rdA(j) for j in (1,3,5,7,9,11,13,15,17)] + toggle(): a(s)
    a("s_mov_b32 s57, 0")
    a(".p2align 3")
    a.label("L_cloop")
    RS = [rdB(3) + [rdA(j) for j in (0,16,2,18,4,6)],
          rdB(0) + [rdA(j) for j in (8,10,12,14)],
          rdB(2) + [rdA(j) for j in (1,17,3,5,7)],
          rdB(4) + [rdA(j) for j in (9,11,13,15)],
          rdB(1) + toggle()]
    for ph in range(5):
        i = TAPS[ph]
        a("s_waitcnt lgkmcnt(0)"); a("s_barrier")
        order = [(f, cf) for f in range(8) for cf in range(2)] if ph < 4 else [(f, cf) for cf in range(2) for f in range(8)]
        fill = list(RS[ph])
        for k, (f, cf) in enumerate(order):
            if not nomfma:
                a("v_mfma_f32_16x16x32_bf16 v[%d:%d], v[%d:%d], v[%d:%d], v[%d:%d]" % (AC(f,cf), AC(f,cf)+3, XA(2*f+i), XA(2*f+i)+3, XB(i,cf), XB(i,cf)+3, AC(f,cf), AC(f,cf)+3))
            if fill: a(fill.pop(0))
        assert not fill
    if itst:
        a("s_cmp_lg_u32 s3, 4"); a("s_cbranch_scc1 L_nost")
        a("s_memrealtime s[84:85]"); a("s_memtime s[86:87]"); a("s_waitcnt lgkmcnt(0)")
        a("s_lshl_b32 s58, s2, 8"); a("s_add_u32 s58, s58, 0x8000060"); a("s_lshl_b32 s59, s57, 4"); a("s_add_u32 s58, s58, s59"); a("v_mov_b32 v1, s58")
        for q in range(4): a("v_mov_b32 v%d, s%d" % (196+q, 84+q))
        a("s_mov_b64 exec, 1")
        a("global_store_dwordx4 v1, v[196:199], s[18:19]")
        a("s_mov_b64 exec, -1")
        a.label("L_nost")
    a("s_cmp_eq_u32 s57, s56"); a("s_cbranch_scc1 L_signal")
    a.label("L_sigdone")
    a("s_add_u32 s57, s57, 1"); a("s_cmp_lt_u32 s57, 8"); a("s_cbranch_scc1 L_cloop")
    if stamps:
        a("s_memrealtime s[68:69]"); a("s_memtime s[70:71]")
    a("s_lshl_b32 s51, s48, 13"); a("v_lshlrev_b32 v2, 4, v0"); a("v_add_u32 v2, s51, v2")
    a("v_xor_b32 v3, 0x2000, v2")
    for f in range(8):
        a("ds_write_b128 v2, v[%d:%d] offset:%d" % (AC(f,0), AC(f,0)+3, f*1024))
    a("s_waitcnt lgkmcnt(0)"); a("s_barrier")
    for f in range(8):
        a("ds_read_b128 v[%d:%d], v3 offset:%d" % (16+4*f, 19+4*f, f*1024))
    a("s_cmp_eq_u32 s45, 15"); a("s_cselect_b32 s53, 0xffff, 0"); a("s_mov_b32 s52, 0")
    for f in range(8):
        a("s_waitcnt lgkmcnt(%d)" % (7-f))
        y = AC(f,1)
        a("v_pk_add_f32 v[%d:%d], v[%d:%d], v[%d:%d]" % (y, y+1, y, y+1, 16+4*f, 17+4*f))
        a("v_pk_add_f32 v[%d:%d], v[%d:%d], v[%d:%d]" % (y+2, y+3, y+2, y+3, 18+4*f, 19+4*f))
        if f >= 6:
            a("v_cndmask_b32 v%d, v%d, 0, s[52:53]" % (y+1, y+1))
        if f == 0:
            a("v_pk_add_f32 v[4:5], v[%d:%d], v[%d:%d]" % (y, y+1, y+2, y+3))
            a("v_pk_mul_f32 v[6:7], v[%d:%d], v[%d:%d]" % (y, y+1, y, y+1))
        else:
            a("v_pk_add_f32 v[4:5], v[4:5], v[%d:%d]" % (y, y+1))
            a("v_pk_fma_f32 v[6:7], v[%d:%d], v[%d:%d], v[6:7]" % (y, y+1, y, y+1))
            a("v_pk_add_f32 v[4:5], v[4:5], v[%d:%d]" % (y+2, y+3))
        a("v_pk_fma_f32 v[6:7], v[%d:%d], v[%d:%d], v[6:7]" % (y+2, y+3, y+2, y+3))
    a("v_add_f32 v4, v4, v5"); a("v_add_f32 v6, v6, v7")
    a("s_nop 1")
    a("v_permlane32_swap_b32 v4, v6")
    a("v_add_f32 v4, v4, v6")
    a("v_mov_b32 v5, v4")
    a("s_nop 1")
    a("v_permlane16_swap_b32 v4, v5")
    a("v_add_f32 v4, v4, v5")
    a("v_min_u32 v4, 0xfffffffe, v4")
    a("s_mov_b32 exec_lo, 0xffff"); a("s_mov_b32 exec_hi, 0xffff")
    a("global_store_dword v14, v4, s[18:19] sc0 sc1")
    a("s_mov_b64 exec, -1")
    if stamps:
        a("s_memrealtime s[72:73]"); a("s_memtime s[74:75]")
    a("s_lshl_b32 s51, s48, 6"); a("s_add_u32 s51, s51, 32768")
    a("v_lshlrev_b32 v2, 13, v9"); a("v_lshl_add_u32 v2, v8, 2, v2"); a("v_add_u32 v2, s51, v2")
    for f in range(8):
        for k in range(0, 4, 2):
            a("ds_write2st64_b32 v2, v%d, v%d offset0:%d offset1:%d" % (AC(f,1)+k, AC(f,1)+k+1, 8*k+f, 8*(k+1)+f))
    a("s_waitcnt lgkmcnt(0)"); a("s_barrier")
    a("s_branch L_final")
    a.label("L_signal")
    a("s_waitcnt vmcnt(0)")
    a("s_lshl_b32 s51, s46, 2"); a("s_add_u32 s51, s51, 64"); a("v_mov_b32 v10, s51"); a("v_mov_b32 v11, 1")
    a("s_mov_b64 exec, 1")
    a("global_atomic_add v10, v11, s[16:17] sc1")
    a("s_mov_b64 exec, -1")
    a("s_branch L_sigdone")

    a.label("L_poll")
    a("s_mov_b32 s58, 0")
    a("s_waitcnt vmcnt(0)")
    a.label("L_pc")
    a("v_cmp_le_u32 vcc, 16, v14")
    a("s_cbranch_vccnz L_pc_ok")
    a("global_load_dword v14, v12, s[16:17] sc0 sc1")
    a("s_add_u32 s58, s58, 1"); a("s_cmp_lt_u32 s58, 0x40000")
    a("s_waitcnt vmcnt(0)")
    a("s_cbranch_scc1 L_pc")
    a.label("L_pc_ok")
    for k in range(4):
        a("global_load_dwordx2 v[%d:%d], v13, s[18:19] offset:%d sc0 sc1" % (20+2*k, 21+2*k, 512*k))
    a("s_add_u32 s58, s58, 1"); a("s_cmp_ge_u32 s58, 0x40000")
    a("s_waitcnt vmcnt(0)")
    a("s_cbranch_scc1 L_ps_ok")
    a("v_max3_u32 v18, v20, v21, v22"); a("v_max3_u32 v19, v23, v24, v25"); a("v_max3_u32 v18, v18, v26, v27"); a("v_max_u32 v18, v18, v19")
    a("v_cmp_eq_u32 vcc, -1, v18")
    a("s_cbranch_vccnz L_pc_ok")
    a.label("L_ps_ok")
    a("v_pk_add_f32 v[20:21], v[20:21], v[22:23]"); a("v_pk_add_f32 v[24:25], v[24:25], v[26:27]"); a("v_pk_add_f32 v[20:21], v[20:21], v[24:25]")
    a("v_mov_b32 v22, v20"); a("v_mov_b32 v23, v21")
    a("s_nop 1")
    a("v_permlane32_swap_b32 v20, v22"); a("v_permlane32_swap_b32 v21, v23")
    a("v_pk_add_f32 v[20:21], v[20:21], v[22:23]")
    a("v_mov_b32 v22, v20"); a("v_mov_b32 v23, v21")
    a("s_nop 1")
    a("v_permlane16_swap_b32 v20, v22"); a("v_permlane16_swap_b32 v21, v23")
    a("v_pk_add_f32 v[20:21], v[20:21], v[22:23]")
    a("s_mov_b32 s58, 0x%x" % f2u(1.0/1998.0))
    a("v_mul_f32 v20, s58, v20")
    a("v_mul_f32 v21, s58, v21")
    a("v_fma_f32 v21, -v20, v20, v21")
    a("v_max_f32 v21, 0, v21")
    a("v_add_f32 v21, 0x%x, v21" % f2u(1e-5))
    a("v_rsq_f32 v21, v21")
    a("v_lshlrev_b32 v15, 16, v15"); a("v_lshlrev_b32 v16, 16, v16"); a("v_lshlrev_b32 v17, 16, v17")
    a("v_add_f32 v20, v20, v15")
    a("v_sub_f32 v20, v15, v20")
    a("v_mul_f32 v21, v21, v16")
    a("v_fma_f32 v20, v20, v21, v17")
    a("s_lshl_b32 s58, s3, 6"); a("s_add_u32 s58, s58, 65536")
    a("v_lshlrev_b32 v10, 2, v10"); a("v_add_u32 v10, s58, v10")
    a("ds_write2_b32 v10, v21, v20 offset0:0 offset1:64")
    a.label("L_final")
    a("v_lshrrev_b32 v2, 3, v0"); a("v_and_b32 v3, 7, v0")
    a("s_lshl_b32 s58, s3, 4"); a("v_add_u32 v2, s58, v2")
    a("v_lshlrev_b32 v4, 8, v2"); a("v_lshl_add_u32 v4, v3, 5, v4")
    for t in range(2):
        a("ds_read_b128 v[%d:%d], v4 offset:%d" % (32+8*t, 35+8*t, 32768 + t*2048))
        a("ds_read_b128 v[%d:%d], v4 offset:%d" % (36+8*t, 39+8*t, 32768 + t*2048 + 16))
    a("v_lshlrev_b32 v5, 5, v3"); a("v_add_u32 v5, 65536, v5")
    a("s_mul_i32 s58, s44, 1998"); a("s_lshl_b32 s59, s45, 7"); a("s_add_u32 s58, s58, s59"); a("s_lshl_b32 s58, s58, 10")
    a("s_lshl_b32 s59, s43, 7"); a("s_add_u32 s58, s58, s59")
    a("v_lshlrev_b32 v6, 10, v2"); a("v_lshl_add_u32 v6, v3, 4, v6"); a("v_add_u32 v6, s58, v6")
    a("v_add_u32 v7, 8192, v6")
    k0 = -2.0*math.sqrt(2.0/math.pi)*math.log2(math.e)
    a("s_mov_b32 s52, 0x%x" % f2u(k0*0.044715)); a("s_mov_b32 s53, 0x%x" % f2u(k0))
    a("s_waitcnt lgkmcnt(0)"); a("s_barrier")
    if stamps:
        a("s_memrealtime s[76:77]"); a("s_memtime s[78:79]")
    a("ds_read_b128 v[16:19], v5"); a("ds_read_b128 v[24:27], v5 offset:256")
    a("ds_read_b128 v[20:23], v5 offset:16"); a("ds_read_b128 v[28:31], v5 offset:272")
    a("s_waitcnt lgkmcnt(0)")
    for t in range(2):
        Y = 32 + 8*t
        T = 48 + 8*t
        for p in range(4):
            a("v_pk_fma_f32 v[%d:%d], v[%d:%d], v[%d:%d], v[%d:%d]" % (Y+2*p, Y+2*p+1, Y+2*p, Y+2*p+1, 16+2*p, 17+2*p, 24+2*p, 25+2*p))
        for p in range(4):
            a("v_pk_mul_f32 v[%d:%d], v[%d:%d], v[%d:%d]" % (T+2*p, T+2*p+1, Y+2*p, Y+2*p+1, Y+2*p, Y+2*p+1))
        for p in range(4):
            a("v_pk_fma_f32 v[%d:%d], v[%d:%d], s[52:53], s[52:53] op_sel:[0,0,1] op_sel_hi:[1,0,1]" % (T+2*p, T+2*p+1, T+2*p, T+2*p+1))
        for p in range(4):
            a("v_pk_mul_f32 v[%d:%d], v[%d:%d], v[%d:%d]" % (T+2*p, T+2*p+1, T+2*p, T+2*p+1, Y+2*p, Y+2*p+1))
        for p in range(8):
            a("v_exp_f32 v%d, v%d" % (T+p, T+p))
        a("s_nop 0")
        for p in range(4):
            a("v_pk_add_f32 v[%d:%d], v[%d:%d], 1.0 op_sel_hi:[1,0]" % (T+2*p, T+2*p+1, T+2*p, T+2*p+1))
        for p in range(8):
            a("v_rcp_f32 v%d, v%d" % (T+p, T+p))
        a("s_nop 0")
        for p in range(4):
            a("v_pk_mul_f32 v[%d:%d], v[%d:%d], v[%d:%d]" % (Y+2*p, Y+2*p+1, Y+2*p, Y+2*p+1, T+2*p, T+2*p+1))
        for p in range(4):
            a("v_cvt_pk_bf16_f32 v%d, v%d, v%d" % (64+4*t+p, Y+2*p, Y+2*p+1))
        a("buffer_store_dwordx4 v[%d:%d], v%d, s[28:31], 0 offen" % (64+4*t, 67+4*t, 6+t))
    if stamps:
        a("s_cmp_lg_u32 s3, 4"); a("s_cbranch_scc1 L_end")
        a("s_waitcnt vmcnt(0)")
        a("s_memrealtime s[80:81]"); a("s_memtime s[82:83]"); a("s_waitcnt lgkmcnt(0)")
        a("s_lshl_b32 s58, s2, 8"); a("s_add_u32 s58, s58, 0x8000000"); a("v_mov_b32 v1, s58")
        a("s_mov_b64 exec, 1")
        if probe is not None:
            j, k = probe
            a("s_sub_u32 s59, s%d, s%d" % (60+4*k, 60+4*j)); a("s_lshl_b32 s59, s59, 2"); a("s_add_u32 s59, s59, 4000")
            a.label("L_probe")
            a("s_memrealtime s[84:85]"); a("s_waitcnt lgkmcnt(0)")
            a("s_sub_u32 s86, s84, s60"); a("s_cmp_lt_u32 s86, s59"); a("s_cbranch_scc1 L_probe")
        if dbgst is not None:
            for idx, wg in enumerate(dbgst):
                a("s_cmp_lg_u32 s2, %d" % wg); a("s_cbranch_scc1 L_nd%d" % idx)
                a("v_mov_b32 v20, s60")
                for k in range(1, 6):
                    a("s_sub_u32 s59, s%d, s60" % (60+4*k)); a("v_mov_b32 v%d, s59" % (20+k))
                a("s_sub_u32 s59, s70, s62"); a("v_mov_b32 v26, s59")
                a("s_sub_u32 s59, s82, s62"); a("v_mov_b32 v27, s59")
                a("v_mov_b32 v2, %d" % (32*idx))
                a("global_store_dwordx4 v2, v[20:23], s[16:17]")
                a("global_store_dwordx4 v2, v[24:27], s[16:17] offset:16")
                a.label("L_nd%d" % idx)
        for k in range(6):
            for q in range(4): a("v_mov_b32 v%d, s%d" % (8+q, 60+4*k+q))
            a("global_store_dwordx4 v1, v[8:11], s[18:19] offset:%d" % (16*k))
            a("s_nop 1")
    a.label("L_end")
    a("s_endpgm")
    txt = wrap(a.text(), 256, 512, 2*BUF, vgpr=200, accum=200, sgpr=96)
    txt = txt.replace(".end_amdhsa_kernel", "  .amdhsa_float_denorm_mode_32 3\n.end_amdhsa_kernel")
    p = out_path or (name + ".s")
    open(p, "w").write(txt)
    return build(p)

if __name__ == "__main__":
    for (j,k) in [(0,0),(0,1),(1,2),(2,3),(3,4),(4,5)]:
        gen("p%d%d" % (j,k), stamps=True, probe=(j,k), out_path="p%d%d.s" % (j,k))
```
